```python
import torch

def _softmax(x, axis=-1):
    return torch.softmax(x, dim=axis)
def _gelu(x):
    return torch.nn.functional.gelu(x, approximate="tanh")
def _silu(x):
    return torch.nn.functional.silu(x)
def _sigmoid(x):
    return torch.sigmoid(x)
def _layernorm(x, axis=-1, eps=1e-5):
    m = x.mean(dim=axis, keepdim=True)
    v = x.var(dim=axis, keepdim=True, unbiased=False)
    return (x - m) / torch.sqrt(v + eps)
def _scatter_add(tgt, idx, src, axis=0):
    return tgt.clone().index_add_(axis, idx, src)
def _segment_sum(src, seg, n):
    out = torch.zeros((n,) + src.shape[1:], dtype=src.dtype)
    return out.index_add_(0, seg, src)
def _pad(x, pw):
    flat = tuple(v for pair in reversed(pw) for v in pair)
    return torch.nn.functional.pad(x, flat)

kernel_name = 'parallel_sum__ssm_conv_h3__glu_gated_glu__prompt'

def setup_inputs():

    _w = (lambda a: (lambda t: t.to(torch.bfloat16) if t.is_floating_point() else t)(torch.as_tensor(a)))
    def _A_setup():
        B, S, D = 1, 2048, 640
        ks = 4
        return {
            "q": _w((lambda *s: torch.randn(*s, dtype=torch.bfloat16) * 0.05)(B, S, D)),
            "k": _w((lambda *s: torch.randn(*s, dtype=torch.bfloat16) * 0.4)(B, S, D)),
            "v": _w((lambda *s: torch.randn(*s, dtype=torch.bfloat16) * 0.4)(B, S, D)),
            "shift_k": _w((lambda *s: torch.randn(*s, dtype=torch.bfloat16) * 0.4)(D, ks) * 0.5),
            "ssm_k": _w((lambda *s: torch.randn(*s, dtype=torch.bfloat16) * 1.6)(D, S) * (1.0 / S ** 0.5)),
            "ssm_D": _w((lambda *s: torch.randn(*s, dtype=torch.bfloat16) * 0.4)(D)),
        }
    _A_in = _A_setup()

    def _B_setup():
        B, S, D, F = 1, 2048, 640, 1728
        return {
            "x": _w((lambda *s: torch.randn(*s, dtype=torch.bfloat16) * 0.05)(B, S, D)),
            "w_gate": _w((lambda *s: torch.randn(*s, dtype=torch.bfloat16) * 0.05)(D, F)),
            "w_up": _w((lambda *s: torch.randn(*s, dtype=torch.bfloat16) * 0.05)(D, F)),
            "w_down": _w((lambda *s: torch.randn(*s, dtype=torch.bfloat16) * 0.05)(F, D)),
        }
    _B_in = _B_setup()

    return {
        "A_q": _A_in["q"],
        "A_k": _A_in["k"],
        "A_v": _A_in["v"],
        "A_shift_k": _A_in["shift_k"],
        "A_ssm_k": _A_in["ssm_k"],
        "A_ssm_D": _A_in["ssm_D"],
        "B_x": _B_in["x"],
        "B_w_gate": _B_in["w_gate"],
        "B_w_up": _B_in["w_up"],
        "B_w_down": _B_in["w_down"],
    }

def reference(A_q, A_k, A_v, A_shift_k, A_ssm_k, A_ssm_D, B_x, B_w_gate, B_w_up, B_w_down):
    def _A_ref(q, k, v, shift_k, ssm_k, ssm_D):
        B, S, D = q.shape
        ks = shift_k.shape[-1]
        k_pad = _pad(k, ((0, 0), (ks - 1, 0), (0, 0)))
        k_shift = torch.zeros_like(k)
        for t in range(ks):
            k_shift = k_shift + k_pad[:, t:t + S, :] * shift_k[:, ks - 1 - t][None, None, :]
        kv = k_shift * v
        L = 2 * S
        kv_pad = _pad(kv, ((0, 0), (0, S), (0, 0)))
        kf_pad = _pad(ssm_k, ((0, 0), (0, S)))
        kv_f = (lambda x, axes=(-2,-1): torch.fft.rfft2(x.float(), dim=axes))(kv_pad[:, None, :, :], axes=(1, 2))
        kf_f = (lambda x, axes=(-2,-1): torch.fft.rfft2(x.float(), dim=axes))(kf_pad[:, None, :], axes=(1, 2))
        kf_f = (lambda x, *d: x.permute(*d))(kf_f, 1, 2, 0)
        y_f = kv_f * kf_f[None, :, :, :]
        y = (lambda x, s, axes=(-2,-1): torch.fft.irfft2(x, s=s, dim=axes).to(torch.bfloat16))(y_f, (1, L), axes=(1, 2))[:, 0, :S, :]
        y = y + kv * ssm_D[None, None, :]
        return q * y

    def _B_ref(x, w_gate, w_up, w_down):
        g = torch.einsum("bsd,df->bsf", x, w_gate)
        u = torch.einsum("bsd,df->bsf", x, w_up)
        h = _sigmoid(g) * u
        return torch.einsum("bsf,fd->bsd", h, w_down)

    x = A_q
    xn = _layernorm(x, axis=-1)
    return x + _A_ref(xn, A_k, A_v, A_shift_k, A_ssm_k, A_ssm_D) + _B_ref(xn, B_w_gate, B_w_up, B_w_down)
```

```python
import sys
KN = "parallel_sum__ssm_conv_h3__glu_gated_glu__prompt"
S, D, F = 2048, 640, 1728
WS_XN  = 0
WS_KVT = 0x300000
WS_H   = 0x600000
WS_TT  = 0xE00000
ROWB = D * 2

class E:
    def __init__(self): self.L = []
    def __call__(self, s): self.L.append("    " + s)
    def lab(self, s): self.L.append(s + ":")
    def txt(self): return "\n".join(self.L) + "\n"

def srd(e, sd, sp, nbytes):
    e(f"s_mov_b32 s{sd}, s{sp}")
    e(f"s_and_b32 s{sd+1}, s{sp+1}, 0xffff")
    e(f"s_mov_b32 s{sd+2}, {nbytes}")
    e(f"s_mov_b32 s{sd+3}, 0x00020000")

def rnd2(e, a, b, t):
    e(f"v_cvt_pk_bf16_f32 v{t}, v{a}, v{b}")
    e(f"v_lshlrev_b32 v{a}, 16, v{t}")
    e(f"v_and_b32 v{b}, 0xffff0000, v{t}")

def wave_sum(e, v):
    for sh in (1, 2, 4, 8):
        e("s_nop 1")
        e(f"v_add_f32_dpp v{v}, v{v}, v{v} row_shr:{sh} row_mask:0xf bank_mask:0xf bound_ctrl:0")
    e("s_nop 1")
    e(f"v_add_f32_dpp v{v}, v{v}, v{v} row_bcast:15 row_mask:0xa bank_mask:0xf")
    e("s_nop 1")
    e(f"v_add_f32_dpp v{v}, v{v}, v{v} row_bcast:31 row_mask:0xc bank_mask:0xf")
    e("s_nop 1")

def prologue(e):
    e("s_load_dwordx4 s[52:55], s[0:1], 0")
    e("s_load_dwordx4 s[56:59], s[0:1], 16")
    e("s_load_dwordx4 s[60:63], s[0:1], 32")
    e("s_load_dwordx4 s[64:67], s[0:1], 56")
    e("s_load_dwordx4 s[68:71], s[0:1], 72")
    e("s_load_dwordx4 s[72:75], s[0:1], 88")
    e("v_lshrrev_b32 v1, 6, v0")
    e("s_nop 0")
    e("v_readfirstlane_b32 s4, v1")
    e("v_and_b32 v0, 63, v0")
    e("s_waitcnt lgkmcnt(0)")
    srd(e, 8, 52, S*D*2); srd(e, 12, 54, S*D*2); srd(e, 16, 56, S*D*2); srd(e, 20, 58, D*4*2)
    srd(e, 24, 60, D*S*2); srd(e, 28, 62, D*2); srd(e, 32, 64, D*F*2); srd(e, 36, 66, D*F*2)
    srd(e, 40, 68, F*D*2); srd(e, 44, 70, S*D*2); srd(e, 48, 74, 0x2000000)

def phase0(e):
    e("s_lshl_b32 s5, s2, 3")
    e("s_add_u32 s5, s5, s4")
    e("s_mul_i32 s6, s5, 1280")
    e("v_mul_u32_u24 v1, 20, v0")
    e("v_mov_b32 v2, s6")
    e("v_add_u32 v2, v2, v1")
    e("buffer_load_dwordx4 v[10:13], v2, s[8:11], 0 offen")
    e("buffer_load_dword v14, v2, s[8:11], 0 offen offset:16")
    e("buffer_load_dwordx4 v[16:19], v2, s[16:19], 0 offen")
    e("buffer_load_dword v20, v2, s[16:19], 0 offen offset:16")
    for j in range(4):
        b = 24 + 6*j
        if j: e(f"v_subrev_u32 v3, {1280*j}, v2");
        vo = "v3" if j else "v2"
        e(f"buffer_load_dwordx4 v[{b}:{b+3}], {vo}, s[12:15], 0 offen")
        e(f"buffer_load_dword v{b+4}, {vo}, s[12:15], 0 offen offset:16")
    e("v_mul_u32_u24 v4, 80, v0")
    for i in range(5):
        e(f"buffer_load_dwordx4 v[{48+4*i}:{51+4*i}], v4, s[20:23], 0 offen offset:{16*i}")
    e("s_waitcnt vmcnt(14)")
    for i in range(5):
        e(f"v_lshlrev_b32 v{70+2*i}, 16, v{10+i}")
        e(f"v_and_b32 v{71+2*i}, 0xffff0000, v{10+i}")
    e("v_mov_b32 v5, 0"); e("v_mov_b32 v6, 0")
    for i in range(10):
        e(f"v_add_f32 v5, v5, v{70+i}")
        e(f"v_fmac_f32 v6, v{70+i}, v{70+i}")
    wave_sum(e, 5); wave_sum(e, 6)
    e("v_readlane_b32 s6, v5, 63")
    e("v_readlane_b32 s7, v6, 63")
    e("s_nop 1")
    e("v_mov_b32 v5, s6"); e("v_mov_b32 v6, s7")
    e("v_mul_f32 v5, 0x3acccccd, v5")
    e("v_mul_f32 v6, 0x3acccccd, v6")
    e("v_fma_f32 v6, -v5, v5, v6")
    rnd2(e, 5, 6, 7)
    e("v_add_f32 v6, 0x3727c5ac, v6")
    e("v_mov_b32 v8, 0")
    rnd2(e, 6, 8, 7)
    e("v_sqrt_f32 v6, v6")
    e("s_nop 0")
    rnd2(e, 6, 8, 7)
    e("v_rcp_f32 v9, v6")
    for i in range(10):
        e(f"v_sub_f32 v{70+i}, v{70+i}, v5")
    for i in range(5):
        rnd2(e, 70+2*i, 71+2*i, 7)
    for i in range(10):
        e(f"v_mul_f32 v{80+i}, v{70+i}, v9")
        e(f"v_fma_f32 v{70+i}, -v{80+i}, v6, v{70+i}")
        e(f"v_fmac_f32 v{80+i}, v{70+i}, v9")
    for i in range(5):
        e(f"v_cvt_pk_bf16_f32 v{10+i}, v{80+2*i}, v{81+2*i}")
    e("v_add_u32 v3, %d, v2" % WS_XN)
    e("buffer_store_dwordx4 v[10:13], v3, s[48:51], 0 offen sc0 sc1")
    e("buffer_store_dword v14, v3, s[48:51], 0 offen offset:16 sc0 sc1")
    e("s_waitcnt vmcnt(2)")
    for i in range(5):
        e(f"v_lshlrev_b32 v{70+2*i}, 16, v{16+i}")
        e(f"v_and_b32 v{71+2*i}, 0xffff0000, v{16+i}")
    for j in range(4):
        for i in range(5):
            e(f"v_lshlrev_b32 v{90+10*j+2*i}, 16, v{24+6*j+i}")
            e(f"v_and_b32 v{91+10*j+2*i}, 0xffff0000, v{24+6*j+i}")
    for c in range(10):
        e(f"v_lshlrev_b32 v4, 16, v{48+2*c}")
        e(f"v_and_b32 v5, 0xffff0000, v{48+2*c}")
        e(f"v_lshlrev_b32 v6, 16, v{49+2*c}")
        e(f"v_and_b32 v7, 0xffff0000, v{49+2*c}")
        e(f"v_mul_f32 v4, v4, v{90+c}")
        e(f"v_mul_f32 v5, v5, v{100+c}")
        e(f"v_mul_f32 v6, v6, v{110+c}")
        e(f"v_mul_f32 v7, v7, v{120+c}")
        rnd2(e, 4, 5, 8); rnd2(e, 6, 7, 8)
        e("v_add_f32 v7, v7, v6"); rnd2(e, 7, 9, 8)
        e("v_add_f32 v7, v7, v5"); rnd2(e, 7, 9, 8)
        e("v_add_f32 v7, v7, v4"); rnd2(e, 7, 9, 8)
        e(f"v_mul_f32 v{130+c}, v7, v{70+c}")
    e("s_lshl_b32 s6, s4, 1")
    e("v_mul_u32_u24 v4, 160, v0")
    e("v_add_u32 v4, s6, v4")
    for i in range(5):
        e(f"v_cvt_pk_bf16_f32 v5, v{130+2*i}, v{131+2*i}")
        e(f"ds_write_b16 v4, v5 offset:{32*i}")
        e(f"ds_write_b16_d16_hi v4, v5 offset:{32*i+16}")
    e("s_waitcnt lgkmcnt(0)")
    e("s_barrier")
    e("s_lshl_b32 s6, s4, 6")
    e("v_add_u32 v4, s6, v0")
    e("v_lshlrev_b32 v5, 4, v4")
    e("ds_read_b128 v[8:11], v5")
    e("ds_read_b128 v[12:15], v5 offset:8192")
    e("v_lshlrev_b32 v5, 12, v4")
    e("s_lshl_b32 s6, s2, 4")
    e("s_add_u32 s6, s6, %d" % WS_KVT)
    e("v_add_u32 v5, s6, v5")
    e("s_waitcnt lgkmcnt(0)")
    e("buffer_store_dwordx4 v[8:11], v5, s[48:51], 0 offen sc0 sc1")
    e("v_cmp_gt_u32 vcc, 128, v4")
    e("s_and_saveexec_b64 s[6:7], vcc")
    e("s_cbranch_execz P0_SKIP")
    e("v_add_u32 v5, %d, v5" % (512*4096))
    e("buffer_store_dwordx4 v[12:15], v5, s[48:51], 0 offen sc0 sc1")
    e.lab("P0_SKIP")
    e("s_mov_b64 exec, s[6:7]")

def desc(name, vg=256, lds=0):
    return f""".p2align 6
.amdhsa_kernel {name}
  .amdhsa_next_free_vgpr {vg}
  .amdhsa_next_free_sgpr 102
  .amdhsa_accum_offset {vg}
  .amdhsa_group_segment_fixed_size 0
  .amdhsa_kernarg_size 104
  .amdhsa_user_sgpr_count 2
  .amdhsa_user_sgpr_kernarg_segment_ptr 1
  .amdhsa_system_sgpr_workgroup_id_x 1
.end_amdhsa_kernel
"""

def kernel(name, body_fns, nwg):
    e = E()
    e.L.append(f".globl {name}\n.p2align 8\n.type {name},@function\n{name}:")
    e(f"s_cmp_ge_u32 s2, {nwg}")
    e(f"s_cbranch_scc1 {name}_END")
    prologue(e)
    for f in body_fns: f(e)
    e.lab(f"{name}_END")
    e("s_endpgm")
    return e.txt()

if __name__ == "__main__":
    which = sys.argv[1] if len(sys.argv) > 1 else "p0"
    out = ""
    kernels = []
    if which == "p0":
        kernels = [("p0_kernel", [phase0], 256, 16384)]
    for n, fns, nwg, lds in kernels:
        out += f"; @launch kernel={n} grid=({nwg},1,1) block=(512,1,1) lds={lds}\n"
    out += '.amdgcn_target "amdgcn-amd-amdhsa--gfx950"\n.text\n'
    for n, fns, nwg, lds in kernels:
        out += kernel(n, fns, nwg)
    out += '.section .rodata,"a"\n'
    for n, fns, nwg, lds in kernels:
        out += desc(n)
    open(sys.argv[2] if len(sys.argv) > 2 else "out.s", "w").write(out)
```

```python
from gen import *
KPITCH = 4240
KVOFF = 8 * KPITCH
SLOT = KVOFF + 96 * 80
M0 = 2055
def conv(e):
    e("s_lshr_b32 s76, s2, 1"); e("s_and_b32 s77, s2, 1")
    e("s_mul_i32 s78, s76, 5")
    e("s_mul_i32 s5, s77, 3")
    e("s_add_u32 s79, s78, s5")
    e("s_lshl_b32 s6, s4, 6"); e("v_add_u32 v1, s6, v0")
    for slot in range(3):
        sbase = slot * SLOT
        if slot < 2: e(f"s_add_u32 s80, s79, {slot}")
        else: e("s_add_u32 s80, s78, 2")
        e("v_cmp_gt_u32 vcc, 264, v1")
        e("s_and_saveexec_b64 s[6:7], vcc")
        e(f"s_cbranch_execz CV_K{slot}")
        e("v_sub_u32 v2, 255, v1"); e("v_lshlrev_b32 v2, 4, v2")
        e("s_lshl_b32 s5, s80, 12")
        for i in range(8): e(f"v_mov_b32 v{10+i}, 0")
        e("v_cmp_le_i32 vcc, 0, v2")
        e("s_and_saveexec_b64 s[82:83], vcc")
        e("v_add_u32 v3, s5, v2")
        e("buffer_load_dwordx4 v[10:13], v3, s[24:27], 0 offen")
        e("s_mov_b64 exec, s[82:83]")
        e("v_cmp_le_i32 vcc, -16, v2")
        e("s_and_saveexec_b64 s[82:83], vcc")
        e("v_add_u32 v3, s5, v2")
        e("buffer_load_dwordx4 v[14:17], v3, s[24:27], 0 offen offset:16")
        e("s_mov_b64 exec, s[82:83]")
        e(f"v_lshlrev_b32 v4, 4, v1")
        e(f"v_add_u32 v4, {sbase}, v4")
        e("s_waitcnt vmcnt(0)")
        for c in range(8):
            o = 8 - c
            for j in range(4):
                k = o // 2 + j
                if o % 2: e(f"v_alignbit_b32 v{20+j}, v{10+k+1}, v{10+k}, 16")
                else: e(f"v_mov_b32 v{20+j}, v{10+k}")
            for j in range(4):
                e(f"v_alignbit_b32 v{24+j}, v{23-j}, v{23-j}, 16")
            e(f"ds_write_b128 v4, v[24:27] offset:{c*KPITCH}")
        e.lab(f"CV_K{slot}")
        e("s_mov_b64 exec, s[6:7]")
        e("v_cmp_le_u32 vcc, 256, v1")
        e("s_and_saveexec_b64 s[6:7], vcc")
        e(f"s_cbranch_execz CV_V{slot}")
        e("v_subrev_u32 v2, 256, v1")
        e("s_lshl_b32 s5, s80, 12"); e(f"s_add_u32 s5, s5, {WS_KVT}")
        e("v_lshlrev_b32 v3, 4, v2"); e("v_add_u32 v3, s5, v3")
        e("buffer_load_dwordx4 v[10:13], v3, s[48:51], 0 offen sc1")
        e("v_lshrrev_b32 v4, 2, v2"); e("v_mul_u32_u24 v4, 80, v4")
        e("v_and_b32 v5, 3, v2"); e("v_lshl_add_u32 v4, v5, 4, v4"); e(f"v_add_u32 v4, {sbase}, v4")
        for i in range(4): e(f"v_mov_b32 v{14+i}, 0")
        e("v_cmp_gt_u32 vcc, 128, v2")
        e("s_and_saveexec_b64 s[82:83], vcc")
        e(f"ds_write_b128 v4, v[14:17] offset:{KVOFF}")
        e("s_mov_b64 exec, s[82:83]")
        e("s_waitcnt vmcnt(0)")
        e(f"ds_write_b128 v4, v[10:13] offset:{KVOFF + 32*80}")
        e.lab(f"CV_V{slot}")
        e("s_mov_b64 exec, s[6:7]")
    e("s_waitcnt lgkmcnt(0)")
    e("s_barrier")
    e("s_mov_b32 s5, 21846"); e("s_mul_i32 s80, s4, s5"); e("s_lshr_b32 s80, s80, 16")
    e("s_mul_i32 s5, s80, 3"); e("s_sub_u32 s81, s4, s5")
    e("s_cmp_lt_u32 s4, 6")
    e("s_cbranch_scc1 CV_T")
    e("s_mov_b32 s80, 2")
    e("s_sub_u32 s81, s4, 6"); e("s_add_u32 s81, s81, s77")
    e("s_cmp_eq_u32 s77, 0"); e("s_cselect_b32 s5, 1, 0")
    e("s_cmp_eq_u32 s4, 7"); e("s_cselect_b32 s6, 1, 0")
    e("s_and_b32 s5, s5, s6")
    e("s_cmp_eq_u32 s5, 1")
    e("s_cbranch_scc0 CV_T")
    e("s_mov_b32 s81, 3")
    e.lab("CV_T")
    e("s_add_u32 s84, s79, s80"); e("s_add_u32 s5, s78, 2"); e("s_cmp_eq_u32 s80, 2"); e("s_cselect_b32 s84, s5, s84")
    e("s_mul_i32 s85, s80, %d" % SLOT)
    e("s_min_u32 s86, s81, 1")
    e("s_cmp_eq_u32 s81, 2"); e("s_cselect_b32 s87, 64, 32")
    e("v_and_b32 v7, 31, v0"); e("v_lshrrev_b32 v8, 5, v0")
    for i in range(16): e(f"v_mov_b32 v{128+i}, 0")
    e("s_cmp_eq_u32 s81, 3")
    e("s_cbranch_scc1 CV_RED")
    e(f"v_sub_u32 v9, {M0}, v7"); e("v_and_b32 v10, 7, v9")
    e("v_sub_u32 v9, v9, v10"); e("v_lshl_add_u32 v9, v8, 3, v9"); e("v_lshlrev_b32 v9, 1, v9")
    e(f"s_mov_b32 s5, {KPITCH}"); e("v_mul_lo_u32 v10, v10, s5"); e("v_add_u32 v9, v9, v10")
    e("s_sub_u32 s5, s87, 1"); e("s_lshl_b32 s5, s5, 6"); e("s_sub_u32 s5, s85, s5")
    e("v_add_u32 v9, s5, v9")
    e("s_lshl_b32 s5, s86, 5"); e("s_add_u32 s5, s5, 33"); e("s_sub_u32 s5, s5, s87")
    e("v_add_u32 v10, s5, v7"); e("v_mul_u32_u24 v10, 80, v10"); e("v_lshl_add_u32 v10, v8, 4, v10")
    e(f"s_add_u32 s5, s85, {KVOFF}"); e("v_add_u32 v10, s5, v10")
    steps = [(r, h) for r in range(32) for h in range(2)]
    def rd(idx):
        r, h = steps[idx]; b = 100 + 8*(idx % 3)
        e(f"ds_read_b128 v[{b}:{b+3}], v9 offset:{64*r+32*h}")
        e(f"ds_read_b128 v[{b+4}:{b+7}], v10 offset:{80*r+32*h}")
    rd(0); rd(1)
    for idx in range(64):
        if idx + 2 < 64: rd(idx + 2); e("s_waitcnt lgkmcnt(4)")
        elif idx + 1 < 64: e("s_waitcnt lgkmcnt(2)")
        else: e("s_waitcnt lgkmcnt(0)")
        b = 100 + 8*(idx % 3)
        e(f"v_mfma_f32_32x32x16_bf16 v[128:143], v[{b}:{b+3}], v[{b+4}:{b+7}], v[128:143]")
    e.lab("CV_RED")
    e("s_nop 7"); e("s_nop 7")
    e("s_barrier")
    e("v_lshlrev_b32 v9, 4, v0"); e("v_add_u32 v9, s85, v9")
    e("s_cmp_eq_u32 s81, 2")
    e("s_cbranch_scc0 CV_R2")
    for j in range(4): e(f"ds_write_b128 v9, v[{128+4*j}:{131+4*j}] offset:{1024*j}")
    e.lab("CV_R2")
    e("s_waitcnt lgkmcnt(0)")
    e("s_barrier")
    e("s_cmp_ge_u32 s81, 2")
    e("s_cbranch_scc1 CV_END")
    e("s_cmp_eq_u32 s81, 1")
    e("s_cbranch_scc0 CV_R3")
    for j in range(4): e(f"ds_read_b128 v[{100+4*j}:{103+4*j}], v9 offset:{1024*j}")
    e("s_waitcnt lgkmcnt(0)")
    for i in range(16): e(f"v_add_f32 v{128+i}, v{128+i}, v{100+i}")
    e.lab("CV_R3")
    e("s_lshl_b32 s5, s84, 1")
    e("v_mov_b32 v11, s5")
    e("buffer_load_ushort v11, v11, s[28:31], 0 offen")
    e("s_lshl_b32 s5, s86, 5"); e("s_add_u32 s5, s5, 32")
    e("v_add_u32 v10, s5, v7"); e("v_mul_u32_u24 v10, 80, v10"); e("v_lshl_add_u32 v10, v8, 3, v10")
    e(f"s_add_u32 s5, s85, {KVOFF}"); e("v_add_u32 v10, s5, v10")
    for j in range(4): e(f"ds_read_b64 v[{100+2*j}:{101+2*j}], v10 offset:{16*j}")
    e("s_lshl_b32 s5, s86, 5"); e("v_add_u32 v12, s5, v7"); e("v_lshlrev_b32 v12, 6, v12"); e("v_lshl_add_u32 v12, v8, 3, v12")
    e("s_lshl_b32 s5, s84, 12"); e(f"s_add_u32 s5, s5, {WS_TT}"); e("v_add_u32 v12, s5, v12")
    e("s_waitcnt vmcnt(0) lgkmcnt(0)")
    e("v_lshlrev_b32 v11, 16, v11")
    for j in range(4):
        a = 128 + 4*j
        rnd2(e, a, a+1, 13); rnd2(e, a+2, a+3, 13)
        e(f"v_lshlrev_b32 v14, 16, v{100+2*j}"); e(f"v_and_b32 v15, 0xffff0000, v{100+2*j}")
        e(f"v_lshlrev_b32 v16, 16, v{101+2*j}"); e(f"v_and_b32 v17, 0xffff0000, v{101+2*j}")
        for r in range(4): e(f"v_mul_f32 v{14+r}, v{14+r}, v11")
        rnd2(e, 14, 15, 13); rnd2(e, 16, 17, 13)
        for r in range(4): e(f"v_add_f32 v{14+r}, v{14+r}, v{a+r}")
        e("v_cvt_pk_bf16_f32 v18, v14, v15"); e("v_cvt_pk_bf16_f32 v19, v16, v17")
        e(f"buffer_store_dwordx2 v[18:19], v12, s[48:51], 0 offen offset:{16*j} sc0 sc1")
    e.lab("CV_END")

if __name__ == "__main__":
    out = ""
    kernels = [("p0_kernel", [phase0], 256, 16384), ("cv_kernel", [conv], 256, 3*SLOT)]
    for n, fns, nwg, lds in kernels:
        out += f"; @launch kernel={n} grid=({nwg},1,1) block=(512,1,1) lds={lds}\n"
    out += '.amdgcn_target "amdgcn-amd-amdhsa--gfx950"\n.text\n'
    for n, fns, nwg, lds in kernels:
        out += kernel(n, fns, nwg)
    out += '.section .rodata,"a"\n'
    for n, fns, nwg, lds in kernels:
        out += desc(n)
    open("cv.s", "w").write(out)
```

```python
from gen import *
G1_STAGE = 49152
def gemm1(e, nstage=3):
    e("s_mov_b32 s5, 159072863")
    e("s_mul_hi_u32 s76, s2, s5")
    e("s_mul_i32 s5, s76, 27")
    e("s_sub_u32 s77, s2, s5")
    e("v_lshrrev_b32 v7, 3, v0")
    e("v_and_b32 v8, 7, v0")
    for j in range(4):
        e(f"s_lshl_b32 s5, s4, 5"); e(f"s_add_u32 s5, s5, {8*j}")
        e("v_add_u32 v9, s5, v7")
        e("v_lshrrev_b32 v10, 1, v9"); e("v_and_b32 v10, 7, v10")
        e("v_xor_b32 v10, v10, v8")
        e("s_lshl_b32 s5, s76, 8")
        e("v_add_u32 v9, s5, v9")
        e("s_mov_b32 s5, 1280")
        e("v_mul_lo_u32 v9, v9, s5")
        e(f"v_lshl_add_u32 v{2+j}, v10, 4, v9")
        if WS_XN: e(f"v_add_u32 v{2+j}, {WS_XN}, v{2+j}")
    e("s_lshl_b32 s5, s4, 3")
    e("v_add_u32 v9, s5, v7")
    e("v_lshrrev_b32 v10, 1, v9"); e("v_and_b32 v10, 1, v10")
    e("v_lshrrev_b32 v11, 2, v8"); e("v_xor_b32 v10, v10, v11")
    e("v_and_b32 v11, 3, v8"); e("v_lshl_add_u32 v10, v10, 2, v11")
    e("s_mov_b32 s5, 3456")
    e("v_mul_lo_u32 v9, v9, s5")
    e("v_lshl_add_u32 v6, v10, 4, v9")
    e("s_lshl_b32 s5, s77, 7")
    e("v_add_u32 v6, s5, v6")
    e("v_and_b32 v7, 31, v0")
    e("v_lshrrev_b32 v8, 5, v0")
    e("s_and_b32 s5, s4, 3"); e("s_lshl_b32 s5, s5, 6")
    for mt in range(2):
        e(f"v_add_u32 v9, s5, v7")
        if mt: e("v_add_u32 v9, 32, v9")
        e("v_lshrrev_b32 v18, 1, v9"); e("v_and_b32 v18, 7, v18")
        e("v_lshlrev_b32 v9, 7, v9")
        for ks in range(4):
            e(f"v_add_u32 v19, {2*ks}, v8")
            e("v_xor_b32 v19, v19, v18")
            e(f"v_lshl_add_u32 v{10+2*ks+mt}, v19, 4, v9")
    e("v_and_b32 v7, 15, v0"); e("v_lshrrev_b32 v8, 2, v7")
    e("v_and_b32 v7, 3, v7")
    e("v_lshrrev_b32 v9, 4, v0")
    e("v_lshrrev_b32 v19, 1, v9")
    e("v_lshl_add_u32 v19, v19, 3, v8")
    e("v_lshlrev_b32 v19, 7, v19")
    e("v_and_b32 v9, 1, v9")
    e("v_lshl_add_u32 v19, v9, 5, v19")
    e("v_lshl_add_u32 v19, v7, 3, v19")
    e("v_lshrrev_b32 v8, 1, v8"); e("v_and_b32 v8, 1, v8")
    e("s_lshr_b32 s5, s4, 2")
    e("v_xor_b32 v8, s5, v8")
    e("v_lshl_add_u32 v18, v8, 6, v19")
    for i in range(64): e(f"v_mov_b32 v{128+i}, 0")
    def dma(kstep):
        sb = (kstep % nstage) * G1_STAGE
        e(f"s_mov_b32 s81, {kstep*128}")
        e(f"s_mov_b32 s82, {kstep*64*3456}")
        e("s_lshl_b32 s5, s4, 12")
        for j in range(4):
            e(f"s_add_u32 m0, s5, {sb + j*1024}")
            e("s_nop 0")
            e(f"buffer_load_dwordx4 v{2+j}, s[48:51], s81 offen sc1 lds")
        e("s_lshl_b32 s5, s4, 10")
        e(f"s_add_u32 m0, s5, {sb + 32768}")
        e("s_nop 0")
        e("buffer_load_dwordx4 v6, s[32:35], s82 offen lds")
        e(f"s_add_u32 m0, s5, {sb + 40960}")
        e("s_nop 0")
        e("buffer_load_dwordx4 v6, s[36:39], s82 offen lds")
    def reads(kstep, ks, buf):
        a = 100 + 8*buf; b = (116, 192)[buf]
        for gi, off in ((0, 32768), (1, 40960)):
            for i in range(2):
                e(f"ds_read_b64_tr_b16 v[{a+4*gi+2*i}:{a+4*gi+2*i+1}], v28 offset:{off + ks*2048 + i*512}")
        for mt in range(2):
            e(f"ds_read_b128 v[{b+4*mt}:{b+4*mt+3}], v{20+2*ks+mt}")
    dma(0); dma(1)
    NK = 10
    for kstep in range(NK):
        sb = (kstep % nstage) * G1_STAGE
        e(f"s_waitcnt vmcnt({6 if kstep < NK-1 else 0})")
        e("s_barrier")
        if kstep + 2 < NK: dma(kstep + 2)
        for i in range(8): e(f"v_add_u32 v{20+i}, {sb}, v{10+i}")
        e(f"v_add_u32 v28, {sb}, v18")
        reads(kstep, 0, 0)
        for ks in range(4):
            if ks < 3:
                reads(kstep, ks+1, (ks+1) % 2)
                e("s_waitcnt lgkmcnt(6)")
            else:
                e("s_waitcnt lgkmcnt(0)")
            buf = ks % 2
            a = 100 + 8*buf; b = (116, 192)[buf]
            for gi in range(2):
                for mt in range(2):
                    acc = 128 + 32*gi + 16*mt
                    e(f"v_mfma_f32_32x32x16_bf16 v[{acc}:{acc+15}], v[{a+4*gi}:{a+4*gi+3}], v[{b+4*mt}:{b+4*mt+3}], v[{acc}:{acc+15}]")
    e("s_nop 7"); e("s_nop 7")
    e("v_and_b32 v7, 31, v0"); e("v_lshrrev_b32 v8, 5, v0")
    e("s_and_b32 s5, s4, 3"); e("s_lshl_b32 s5, s5, 6")
    e("s_lshl_b32 s6, s76, 8"); e("s_add_u32 s5, s5, s6")
    e("s_lshl_b32 s6, s77, 1"); e("s_lshr_b32 s7, s4, 2"); e("s_add_u32 s6, s6, s7")
    for mt in range(2):
        e(f"v_add_u32 v9, s5, v7")
        if mt: e("v_add_u32 v9, 32, v9")
        e("v_lshrrev_b32 v10, 4, v9")
        e("s_mov_b32 s7, 54")
        e("v_mul_lo_u32 v10, v10, s7")
        e("v_add_u32 v10, s6, v10")
        e("v_lshlrev_b32 v10, 10, v10")
        e("v_and_b32 v9, 15, v9")
        e("v_lshl_add_u32 v10, v9, 4, v10")
        e("v_lshl_add_u32 v10, v8, 3, v10")
        e(f"v_add_u32 v10, {WS_H}, v10")
        for j in range(4):
            g0 = 128 + 16*mt + 4*j; u0 = 160 + 16*mt + 4*j
            rnd2(e, g0, g0+1, 11); rnd2(e, g0+2, g0+3, 11)
            rnd2(e, u0, u0+1, 11); rnd2(e, u0+2, u0+3, 11)
            for r in range(4):
                e(f"v_mul_f32 v{g0+r}, 0xbfb8aa3b, v{g0+r}")
            for r in range(4):
                e(f"v_exp_f32 v{g0+r}, v{g0+r}")
            for r in range(4):
                e(f"v_add_f32 v{g0+r}, 1.0, v{g0+r}")
            for r in range(4):
                e(f"v_rcp_f32 v{g0+r}, v{g0+r}")
            e("s_nop 0")
            rnd2(e, g0, g0+1, 11); rnd2(e, g0+2, g0+3, 11)
            for r in range(4):
                e(f"v_mul_f32 v{g0+r}, v{g0+r}, v{u0+r}")
            e(f"v_cvt_pk_bf16_f32 v12, v{g0}, v{g0+1}")
            e(f"v_cvt_pk_bf16_f32 v13, v{g0+2}, v{g0+3}")
            e(f"buffer_store_dwordx2 v[12:13], v10, s[48:51], 0 offen offset:{j*256} sc0 sc1")

if __name__ == "__main__":
    out = ""
    kernels = [("p0_kernel", [phase0], 256, 16384), ("g1_kernel", [gemm1], 216, 3*G1_STAGE)]
    for n, fns, nwg, lds in kernels:
        out += f"; @launch kernel={n} grid=({nwg},1,1) block=(512,1,1) lds={lds}\n"
    out += '.amdgcn_target "amdgcn-amd-amdhsa--gfx950"\n.text\n'
    for n, fns, nwg, lds in kernels:
        out += kernel(n, fns, nwg)
    out += '.section .rodata,"a"\n'
    for n, fns, nwg, lds in kernels:
        out += desc(n)
    open("g1.s", "w").write(out)
```

```python
from gen import *
def gemm2(e, pre_epi=None):
    e("s_lshr_b32 s76, s2, 3")
    e("s_and_b32 s77, s2, 7")
    e("s_mul_i32 s78, s4, 10240")
    for j in range(5):
        e(f"v_add_u32 v7, {64*j}, v0")
        e("s_mov_b32 s5, 6554"); e("v_mul_u32_u24 v8, s5, v7"); e("v_lshrrev_b32 v8, 16, v8")
        e("v_mul_u32_u24 v9, 10, v8"); e("v_sub_u32 v9, v7, v9")
        e("v_mul_u32_u24 v8, 1280, v8"); e(f"v_lshl_add_u32 v{2+j}, v9, 4, v8")
        e("s_mul_i32 s5, s77, 160"); e(f"v_add_u32 v{2+j}, s5, v{2+j}")
    e("s_mul_i32 s5, s76, %d" % (4*54*1024)); e(f"s_add_u32 s5, s5, {WS_H}")
    e("v_lshlrev_b32 v7, 4, v0"); e("v_add_u32 v7, s5, v7")
    e("v_and_b32 v9, 15, v0"); e("v_lshrrev_b32 v10, 2, v9"); e("v_and_b32 v9, 3, v9")
    e("v_lshrrev_b32 v11, 4, v0"); e("v_lshl_add_u32 v10, v11, 3, v10")
    e("v_mul_u32_u24 v10, 160, v10"); e("v_lshl_add_u32 v8, v9, 3, v10"); e("v_add_u32 v8, s78, v8")
    for i in range(80): e(f"v_mov_b32 v{128+i}, 0")
    def fetch(it):
        e(f"s_add_u32 s80, s4, {8*it}")
        e("s_mul_i32 s81, s80, 40960")
        e("s_lshl_b32 s82, s80, 10")
        for j in range(5):
            e(f"s_add_u32 m0, s78, {(it%2)*5120 + j*1024}"); e("s_nop 0")
            e(f"buffer_load_dwordx4 v{2+j}, s[40:43], s81 offen lds")
        b = 64 + 16*(it % 2)
        for n in range(4):
            e(f"buffer_load_dwordx4 v[{b+4*n}:{b+4*n+3}], v7, s[48:51], s82 offen offset:0 sc1" if n == 0 else
              f"buffer_load_dwordx4 v[{b+4*n}:{b+4*n+3}], v{20+n}, s[48:51], s82 offen sc1")
    for n in range(1, 4): e(f"v_add_u32 v{20+n}, {n*54*1024}, v7")
    def comp(it):
        b = 64 + 16*(it % 2)
        for dt in range(5):
            for i in range(2):
                e(f"ds_read_b64_tr_b16 v[{96+4*dt+2*i}:{97+4*dt+2*i}], v8 offset:{(it%2)*5120 + i*640 + dt*32}")
        e("s_waitcnt lgkmcnt(0)")
        for dt in range(5):
            for n in range(4):
                a = 128 + 4*(dt*4+n)
                e(f"v_mfma_f32_16x16x32_bf16 v[{a}:{a+3}], v[{96+4*dt}:{99+4*dt}], v[{b+4*n}:{b+4*n+3}], v[{a}:{a+3}]")
    fetch(0)
    for it in range(7):
        if it < 5:
            fetch(it+1); e("s_waitcnt vmcnt(9)")
        elif it == 5:
            e("s_cmp_ge_u32 s4, 6"); e("s_cbranch_scc1 G2_L5")
            fetch(6); e("s_waitcnt vmcnt(9)"); e("s_branch G2_L5b")
            e.lab("G2_L5"); e("s_waitcnt vmcnt(0)"); e.lab("G2_L5b")
        else:
            e("s_cmp_ge_u32 s4, 6"); e("s_cbranch_scc1 G2_DONE")
            e("s_waitcnt vmcnt(0)")
        comp(it)
    e.lab("G2_DONE")
    e("s_nop 7"); e("s_nop 7")
    e("s_lshl_b32 s6, s4, 6"); e("v_add_u32 v1, s6, v0")
    for rnd_i in range(2):
        e("s_barrier")
        e("s_mul_i32 s5, s4, 10240"); e("v_lshlrev_b32 v9, 4, v0"); e("v_add_u32 v9, s5, v9")
        for t in range(10):
            a = 128 + 4*(10*rnd_i + t)
            e(f"ds_write_b128 v9, v[{a}:{a+3}] offset:{1024*t}")
        e("s_waitcnt lgkmcnt(0)"); e("s_barrier")
        for k in range(2):
            item = 2*rnd_i + k
            if k:
                e("v_cmp_gt_u32 vcc, 128, v1"); e("s_and_saveexec_b64 s[6:7], vcc"); e(f"s_cbranch_execz G2_S{item}")
            e("v_lshlrev_b32 v9, 4, v1")
            if k: e("v_add_u32 v9, 8192, v9")
            for w in range(8):
                e(f"ds_read_b128 v[{96+4*w}:{99+4*w}], v9 offset:{10240*w}") if 10240*w < 65536 else None
            e("v_add_u32 v10, 61440, v9"); e("ds_read_b128 v[124:127], v10 offset:10240")
            e("s_waitcnt lgkmcnt(0)")
            for r in range(4):
                e(f"v_add_f32 v{96+r}, v{96+r}, v{100+r}"); e(f"v_add_f32 v{104+r}, v{104+r}, v{108+r}")
                e(f"v_add_f32 v{112+r}, v{112+r}, v{116+r}"); e(f"v_add_f32 v{120+r}, v{120+r}, v{124+r}")
                e(f"v_add_f32 v{96+r}, v{96+r}, v{104+r}"); e(f"v_add_f32 v{112+r}, v{112+r}, v{120+r}")
                e(f"v_add_f32 v{208+4*item+r}, v{96+r}, v{112+r}")
            if k: e.lab(f"G2_S{item}"); e("s_mov_b64 exec, s[6:7]")
    if pre_epi: pre_epi(e)
    for item in range(4):
        k = item % 2; rnd_i = item // 2
        if k: e("v_cmp_gt_u32 vcc, 128, v1"); e("s_and_saveexec_b64 s[6:7], vcc"); e(f"s_cbranch_execz G2_E{item}")
        e(f"v_add_u32 v9, {512*k}, v1"); e("v_lshrrev_b32 v10, 6, v9"); e(f"v_add_u32 v10, {10*rnd_i}, v10")
        e("v_and_b32 v9, 63, v9")
        e("v_lshrrev_b32 v11, 2, v10"); e("v_and_b32 v12, 3, v10")
        e("v_and_b32 v13, 15, v9"); e("v_lshl_add_u32 v13, v12, 4, v13")
        e("s_lshl_b32 s5, s76, 6"); e("v_add_u32 v13, s5, v13")
        e("v_lshrrev_b32 v14, 4, v9"); e("v_lshlrev_b32 v14, 2, v14"); e("v_lshl_add_u32 v14, v11, 4, v14")
        e("s_mul_i32 s5, s77, 80"); e("v_add_u32 v14, s5, v14")
        e("v_mul_u32_u24 v15, 1280, v13"); e("v_lshl_add_u32 v15, v14, 1, v15")
        e("buffer_load_dwordx2 v[16:17], v15, s[8:11], 0 offen")
        e(f"v_add_u32 v24, {WS_XN}, v15"); e("buffer_load_dwordx2 v[18:19], v24, s[48:51], 0 offen sc1")
        e("v_lshlrev_b32 v24, 12, v14"); e("v_lshl_add_u32 v24, v13, 1, v24"); e(f"v_add_u32 v24, {WS_TT}, v24")
        for r in range(4):
            e(f"buffer_load_ushort v{20+r}, v24, s[48:51], 0 offen offset:{4096*r} sc1") if 4096*r < 4096 else (
              e(f"v_add_u32 v25, {4096*r}, v24"), e(f"buffer_load_ushort v{20+r}, v25, s[48:51], 0 offen sc1"))
        e("s_waitcnt vmcnt(0)")
        a = 208 + 4*item
        rnd2(e, a, a+1, 26); rnd2(e, a+2, a+3, 26)
        e("v_lshlrev_b32 v26, 16, v18"); e("v_and_b32 v27, 0xffff0000, v18"); e("v_lshlrev_b32 v28, 16, v19"); e("v_and_b32 v29, 0xffff0000, v19")
        for r in range(4):
            e(f"v_lshlrev_b32 v{20+r}, 16, v{20+r}"); e(f"v_mul_f32 v{26+r}, v{26+r}, v{20+r}")
        rnd2(e, 26, 27, 30); rnd2(e, 28, 29, 30)
        e("v_lshlrev_b32 v20, 16, v16"); e("v_and_b32 v21, 0xffff0000, v16"); e("v_lshlrev_b32 v22, 16, v17"); e("v_and_b32 v23, 0xffff0000, v17")
        for r in range(4): e(f"v_add_f32 v{26+r}, v{26+r}, v{20+r}")
        rnd2(e, 26, 27, 30); rnd2(e, 28, 29, 30)
        for r in range(4): e(f"v_add_f32 v{26+r}, v{26+r}, v{a+r}")
        e("v_cvt_pk_bf16_f32 v16, v26, v27"); e("v_cvt_pk_bf16_f32 v17, v28, v29")
        e("buffer_store_dwordx2 v[16:17], v15, s[44:47], 0 offen")
        if k: e.lab(f"G2_E{item}"); e("s_mov_b64 exec, s[6:7]")

def build(kernels, fn):
    out = ""
    for n, fns, nwg, lds in kernels:
        out += f"; @launch kernel={n} grid=({nwg},1,1) block=(512,1,1) lds={lds}\n"
    out += '.amdgcn_target "amdgcn-amd-amdhsa--gfx950"\n.text\n'
    for n, fns, nwg, lds in kernels:
        out += kernel(n, fns, nwg)
    out += '.section .rodata,"a"\n'
    for n, fns, nwg, lds in kernels:
        out += desc(n)
    open(fn, "w").write(out)

if __name__ == "__main__":
    from gen_g1 import gemm1, G1_STAGE
    from gen_cv import conv, SLOT
    build([("p0_kernel", [phase0], 256, 16384), ("g1_kernel", [gemm1], 216, 3*G1_STAGE),
           ("cv_kernel", [conv], 256, 3*SLOT), ("g2_kernel", [gemm2], 256, 81920)], "all4.s")
```

```python
from gen import *
from gen_g1 import gemm1, G1_STAGE
from gen_cv import conv, SLOT
from gen_g2 import gemm2, build
def g1cv(e):
    e("s_cmp_ge_u32 s2, 216"); e("s_cbranch_scc1 NOG1")
    gemm1(e)
    e("s_waitcnt vmcnt(0)"); e("s_barrier")
    e.lab("NOG1")
    conv(e)
build([("p0_kernel", [phase0], 256, 16384), ("g1_kernel", [g1cv], 256, 3*G1_STAGE),
       ("g2_kernel", [gemm2], 256, 122880)], "m3.s")
s = open("m3.s").read().replace(" sc0 sc1", "").replace(" sc1 lds", " lds").replace(" sc1", "")
open("m3.s", "w").write(s)
```

```python
from gen import *
def gemm2(e, pre_epi=None):
    e("s_lshr_b32 s76, s2, 3")
    e("s_and_b32 s77, s2, 7")
    e("s_mul_i32 s78, s4, 15360")
    for j in range(5):
        e(f"v_add_u32 v7, {64*j}, v0")
        e("s_mov_b32 s5, 6554"); e("v_mul_u32_u24 v8, s5, v7"); e("v_lshrrev_b32 v8, 16, v8")
        e("v_mul_u32_u24 v9, 10, v8"); e("v_sub_u32 v9, v7, v9")
        e("v_mul_u32_u24 v8, 1280, v8"); e(f"v_lshl_add_u32 v{2+j}, v9, 4, v8")
        e("s_mul_i32 s5, s77, 160"); e(f"v_add_u32 v{2+j}, s5, v{2+j}")
    e("s_mul_i32 s5, s76, %d" % (4*54*1024)); e(f"s_add_u32 s5, s5, {WS_H}")
    e("v_lshlrev_b32 v7, 4, v0"); e("v_add_u32 v7, s5, v7")
    e("v_and_b32 v9, 15, v0"); e("v_lshrrev_b32 v10, 2, v9"); e("v_and_b32 v9, 3, v9")
    e("v_lshrrev_b32 v11, 4, v0"); e("v_lshl_add_u32 v10, v11, 3, v10")
    e("v_mul_u32_u24 v10, 160, v10"); e("v_lshl_add_u32 v8, v9, 3, v10"); e("v_add_u32 v8, s78, v8")
    for i in range(80): e(f"v_mov_b32 v{128+i}, 0")
    def fetch(it):
        e(f"s_add_u32 s80, s4, {8*it}")
        e("s_mul_i32 s81, s80, 40960")
        e("s_lshl_b32 s82, s80, 10")
        for j in range(5):
            e(f"s_add_u32 m0, s78, {(it%3)*5120 + j*1024}"); e("s_nop 0")
            e(f"buffer_load_dwordx4 v{2+j}, s[40:43], s81 offen lds")
        b = 64 + 16*(it % 3)
        for n in range(4):
            e(f"buffer_load_dwordx4 v[{b+4*n}:{b+4*n+3}], v7, s[48:51], s82 offen offset:0 sc1" if n == 0 else
              f"buffer_load_dwordx4 v[{b+4*n}:{b+4*n+3}], v{20+n}, s[48:51], s82 offen sc1")
    for n in range(1, 4): e(f"v_add_u32 v{20+n}, {n*54*1024}, v7")
    def comp(it):
        b = 64 + 16*(it % 3)
        for dt in range(5):
            for i in range(2):
                e(f"ds_read_b64_tr_b16 v[{208+4*dt+2*i}:{209+4*dt+2*i}], v8 offset:{(it%3)*5120 + i*640 + dt*32}")
        e("s_waitcnt lgkmcnt(0)")
        for dt in range(5):
            for n in range(4):
                a = 128 + 4*(dt*4+n)
                e(f"v_mfma_f32_16x16x32_bf16 v[{a}:{a+3}], v[{208+4*dt}:{211+4*dt}], v[{b+4*n}:{b+4*n+3}], v[{a}:{a+3}]")
    fetch(0); fetch(1)
    for it in range(7):
        if it < 4:
            fetch(it+2); e("s_waitcnt vmcnt(18)")
        elif it == 4:
            e("s_cmp_ge_u32 s4, 6"); e("s_cbranch_scc1 G2_L5")
            fetch(6); e("s_waitcnt vmcnt(18)"); e("s_branch G2_L5b")
            e.lab("G2_L5"); e("s_waitcnt vmcnt(9)"); e.lab("G2_L5b")
        elif it == 5:
            e("s_cmp_ge_u32 s4, 6"); e("s_cbranch_scc1 G2_L6")
            e("s_waitcnt vmcnt(9)"); e("s_branch G2_L6b")
            e.lab("G2_L6"); e("s_waitcnt vmcnt(0)"); e.lab("G2_L6b")
        else:
            e("s_cmp_ge_u32 s4, 6"); e("s_cbranch_scc1 G2_DONE")
            e("s_waitcnt vmcnt(0)")
        comp(it)
    e.lab("G2_DONE")
    e("s_nop 7"); e("s_nop 7")
    e("s_lshl_b32 s6, s4, 6"); e("v_add_u32 v1, s6, v0")
    for rnd_i in range(2):
        e("s_barrier")
        e("s_mul_i32 s5, s4, 10240"); e("v_lshlrev_b32 v9, 4, v0"); e("v_add_u32 v9, s5, v9")
        for t in range(10):
            a = 128 + 4*(10*rnd_i + t)
            e(f"ds_write_b128 v9, v[{a}:{a+3}] offset:{1024*t}")
        e("s_waitcnt lgkmcnt(0)"); e("s_barrier")
        for k in range(2):
            item = 2*rnd_i + k
            if k:
                e("v_cmp_gt_u32 vcc, 128, v1"); e("s_and_saveexec_b64 s[6:7], vcc"); e(f"s_cbranch_execz G2_S{item}")
            e("v_lshlrev_b32 v9, 4, v1")
            if k: e("v_add_u32 v9, 8192, v9")
            for w in range(8):
                e(f"ds_read_b128 v[{96+4*w}:{99+4*w}], v9 offset:{10240*w}") if 10240*w < 65536 else None
            e("v_add_u32 v10, 61440, v9"); e("ds_read_b128 v[124:127], v10 offset:10240")
            e("s_waitcnt lgkmcnt(0)")
            for r in range(4):
                e(f"v_add_f32 v{96+r}, v{96+r}, v{100+r}"); e(f"v_add_f32 v{104+r}, v{104+r}, v{108+r}")
                e(f"v_add_f32 v{112+r}, v{112+r}, v{116+r}"); e(f"v_add_f32 v{120+r}, v{120+r}, v{124+r}")
                e(f"v_add_f32 v{96+r}, v{96+r}, v{104+r}"); e(f"v_add_f32 v{112+r}, v{112+r}, v{120+r}")
                e(f"v_add_f32 v{208+4*item+r}, v{96+r}, v{112+r}")
            if k: e.lab(f"G2_S{item}"); e("s_mov_b64 exec, s[6:7]")
    if pre_epi: pre_epi(e)
    for item in range(4):
        k = item % 2; rnd_i = item // 2
        if k: e("v_cmp_gt_u32 vcc, 128, v1"); e("s_and_saveexec_b64 s[6:7], vcc"); e(f"s_cbranch_execz G2_E{item}")
        e(f"v_add_u32 v9, {512*k}, v1"); e("v_lshrrev_b32 v10, 6, v9"); e(f"v_add_u32 v10, {10*rnd_i}, v10")
        e("v_and_b32 v9, 63, v9")
        e("v_lshrrev_b32 v11, 2, v10"); e("v_and_b32 v12, 3, v10")
        e("v_and_b32 v13, 15, v9"); e("v_lshl_add_u32 v13, v12, 4, v13")
        e("s_lshl_b32 s5, s76, 6"); e("v_add_u32 v13, s5, v13")
        e("v_lshrrev_b32 v14, 4, v9"); e("v_lshlrev_b32 v14, 2, v14"); e("v_lshl_add_u32 v14, v11, 4, v14")
        e("s_mul_i32 s5, s77, 80"); e("v_add_u32 v14, s5, v14")
        e("v_mul_u32_u24 v15, 1280, v13"); e("v_lshl_add_u32 v15, v14, 1, v15")
        e("buffer_load_dwordx2 v[16:17], v15, s[8:11], 0 offen")
        e(f"v_add_u32 v24, {WS_XN}, v15"); e("buffer_load_dwordx2 v[18:19], v24, s[48:51], 0 offen sc1")
        e("v_lshlrev_b32 v24, 12, v14"); e("v_lshl_add_u32 v24, v13, 1, v24"); e(f"v_add_u32 v24, {WS_TT}, v24")
        for r in range(4):
            e(f"buffer_load_ushort v{20+r}, v24, s[48:51], 0 offen offset:{4096*r} sc1") if 4096*r < 4096 else (
              e(f"v_add_u32 v25, {4096*r}, v24"), e(f"buffer_load_ushort v{20+r}, v25, s[48:51], 0 offen sc1"))
        e("s_waitcnt vmcnt(0)")
        a = 208 + 4*item
        rnd2(e, a, a+1, 26); rnd2(e, a+2, a+3, 26)
        e("v_lshlrev_b32 v26, 16, v18"); e("v_and_b32 v27, 0xffff0000, v18"); e("v_lshlrev_b32 v28, 16, v19"); e("v_and_b32 v29, 0xffff0000, v19")
        for r in range(4):
            e(f"v_lshlrev_b32 v{20+r}, 16, v{20+r}"); e(f"v_mul_f32 v{26+r}, v{26+r}, v{20+r}")
        rnd2(e, 26, 27, 30); rnd2(e, 28, 29, 30)
        e("v_lshlrev_b32 v20, 16, v16"); e("v_and_b32 v21, 0xffff0000, v16"); e("v_lshlrev_b32 v22, 16, v17"); e("v_and_b32 v23, 0xffff0000, v17")
        for r in range(4): e(f"v_add_f32 v{26+r}, v{26+r}, v{20+r}")
        rnd2(e, 26, 27, 30); rnd2(e, 28, 29, 30)
        for r in range(4): e(f"v_add_f32 v{26+r}, v{26+r}, v{a+r}")
        e("v_cvt_pk_bf16_f32 v16, v26, v27"); e("v_cvt_pk_bf16_f32 v17, v28, v29")
        e("buffer_store_dwordx2 v[16:17], v15, s[44:47], 0 offen")
        if k: e.lab(f"G2_E{item}"); e("s_mov_b64 exec, s[6:7]")

def build(kernels, fn):
    out = ""
    for n, fns, nwg, lds in kernels:
        out += f"; @launch kernel={n} grid=({nwg},1,1) block=(512,1,1) lds={lds}\n"
    out += '.amdgcn_target "amdgcn-amd-amdhsa--gfx950"\n.text\n'
    for n, fns, nwg, lds in kernels:
        out += kernel(n, fns, nwg)
    out += '.section .rodata,"a"\n'
    for n, fns, nwg, lds in kernels:
        out += desc(n)
    open(fn, "w").write(out)

if __name__ == "__main__":
    from gen_g1 import gemm1, G1_STAGE
    from gen_cv import conv, SLOT
    build([("p0_kernel", [phase0], 256, 16384), ("g1_kernel", [gemm1], 216, 3*G1_STAGE),
           ("cv_kernel", [conv], 256, 3*SLOT), ("g2_kernel", [gemm2], 256, 81920)], "all4.s")
```
